```python
import torch

def _softmax(x, axis=-1):
    return torch.softmax(x, dim=axis)
def _gelu(x):
    return torch.nn.functional.gelu(x, approximate="tanh")
def _silu(x):
    return torch.nn.functional.silu(x)
def _sigmoid(x):
    return torch.sigmoid(x)
def _layernorm(x, axis=-1, eps=1e-5):
    m = x.mean(dim=axis, keepdim=True)
    v = x.var(dim=axis, keepdim=True, unbiased=False)
    return (x - m) / torch.sqrt(v + eps)
def _scatter_add(tgt, idx, src, axis=0):
    return tgt.clone().index_add_(axis, idx, src)
def _segment_sum(src, seg, n):
    out = torch.zeros((n,) + src.shape[1:], dtype=src.dtype)
    return out.index_add_(0, seg, src)
def _pad(x, pw):
    flat = tuple(v for pair in reversed(pw) for v in pair)
    return torch.nn.functional.pad(x, flat)

kernel_name = 'standalone__mixer_channel_mlp__prompt'

def setup_inputs():

    _w = (lambda a: (lambda t: t.to(torch.bfloat16) if t.is_floating_point() else t)(torch.as_tensor(a)))
    B, S, D, F = 1, 2048, 512, 1792
    return {
        "x": _w((lambda *s: torch.randn(*s, dtype=torch.bfloat16) * 0.05)(B, S, D)),
        "w1": _w((lambda *s: torch.randn(*s, dtype=torch.bfloat16) * 0.8)(D, F) * (D ** -0.5)),
        "b1": _w((lambda *s: torch.randn(*s, dtype=torch.bfloat16) * 0.4)(F)),
        "w2": _w((lambda *s: torch.randn(*s, dtype=torch.bfloat16) * 0.05)(F, D) * (F ** -0.5)),
        "b2": _w((lambda *s: torch.randn(*s, dtype=torch.bfloat16) * 0.05)(D)),
    }

def reference(x, w1, b1, w2, b2):
    y = _layernorm(x, axis=-1)
    h = _gelu(torch.einsum("bsd,df->bsf", y, w1) + b1)
    return torch.einsum("bsf,fd->bsd", h, w2) + b2
```

```python
out = []
A = out.append
K = "standalone__mixer_channel_mlp__prompt_kernel"
import sys
NW = int(sys.argv[1]) if len(sys.argv) > 1 else 1
MODE = sys.argv[2] if len(sys.argv) > 2 else "dma"
A(f"; @launch grid=({NW},1,1) block=(512,1,1) lds=131072")
A('.amdgcn_target "amdgcn-amd-amdhsa--gfx950"')
A(".text")
A(f".globl {K}\n.p2align 8\n.type {K},@function\n{K}:")
A(f"s_cmp_ge_u32 s2, {NW}\ns_cbranch_scc1 L_end")
A("s_load_dwordx2 s[4:5], s[0:1], 48")
A("s_load_dwordx2 s[6:7], s[0:1], 0")
A("s_waitcnt lgkmcnt(0)")
A("s_mov_b32 s24, s6\ns_mov_b32 s25, s7\ns_mov_b32 s26, 2097152\ns_mov_b32 s27, 0x00020000")
A("v_lshrrev_b32 v1, 6, v0\ns_nop 0\nv_readfirstlane_b32 s36, v1")
A("s_cmp_ge_u32 s36, 4\ns_cbranch_scc1 L_run")
A("v_and_b32 v2, 63, v0\nv_lshlrev_b32 v6, 4, v2")
A("s_lshl_b32 s42, s36, 12\ns_lshl_b32 s45, s36, 12\ns_add_u32 m0, s45, 65536\ns_mov_b32 s46, 0")
A("s_memtime s[50:51]")
A("L_ld:")
if MODE == "dma":
    for i in range(4):
        A(f"buffer_load_dwordx4 v6, s[24:27], s42 offen offset:{i*1024} lds")
    A("s_waitcnt vmcnt(16)")
elif MODE == "vgpr":
    for i in range(4):
        A(f"buffer_load_dwordx4 v[{16+4*i}:{19+4*i}], v6, s[24:27], s42 offen offset:{i*1024}")
    A("s_waitcnt vmcnt(16)")
else:
    A("s_sleep 4")
A("s_add_u32 s42, s42, 16384\ns_and_b32 s42, s42, 0xfffff\ns_add_u32 s46, s46, 1\ns_cmp_lt_u32 s46, 900\ns_cbranch_scc1 L_ld")
A("s_waitcnt vmcnt(0)")
A("s_memtime s[52:53]\ns_waitcnt lgkmcnt(0)\ns_sub_u32 s16, s52, s50\nv_mov_b32 v5, s16\nv_mov_b32 v6, 252")
A("s_mov_b32 s8, s4\ns_mov_b32 s9, s5\ns_mov_b32 s10, 256\ns_mov_b32 s11, 0x00020000")
A("s_or_b32 s17, s2, s36\ns_cmp_lg_u32 s17, 0\ns_cbranch_scc1 L_end")
A("buffer_store_dword v5, v6, s[8:11], 0 offen")
A("s_endpgm")
A("L_run:")
A("v_and_b32 v0, 255, v0")
A("s_mov_b32 s8, s4\ns_mov_b32 s9, s5\ns_mov_b32 s10, 256\ns_mov_b32 s11, 0x00020000")
for i in range(16, 256): A(f"v_mov_b32 v{i}, 0")
A("v_and_b32 v1, 63, v0")
A("v_lshlrev_b32 v2, 4, v1")
A("v_lshlrev_b32 v3, 3, v1")
A("s_mov_b32 s30, 0x3f803f80")
A("v_lshlrev_b32 v4, 4, v0")
for i in range(16): A(f"ds_write_b128 v4, v[16:19] offset:{i*4096}")
A("s_waitcnt lgkmcnt(0)")
cnt = [0]
def mf(acc=None):
    cnt[0] += 1
    a = 64 + (cnt[0] % 2) * 16
    s = cnt[0] % 8
    return f"v_mfma_f32_32x32x16_bf16 v[{a}:{a+15}], v[{32+4*s}:{35+4*s}], v[{128+4*(s//2)}:{131+4*(s//2)}], v[{a}:{a+15}]"
rc = [0]
def tr():
    rc[0] += 1
    r = 160 + 2 * (rc[0] % 16)
    return f"ds_read_b64_tr_b16 v[{r}:{r+1}], v3 offset:{(rc[0]%32)*512}"
def b128():
    rc[0] += 1
    r = 200 + 4 * (rc[0] % 8)
    return f"ds_read_b128 v[{r}:{r+3}], v2 offset:{(rc[0]%32)*1024}"
dc = [0]
def dot():
    dc[0] += 1
    k = dc[0]
    if k % 2: return f"v_dot2c_f32_bf16 v{16+(k//2)%2}, v{128+k%16}, v{128+k%16}"
    return f"v_dot2c_f32_bf16 v{18+(k//2)%2}, s30, v{128+k%16}"
def dot8():
    dc[0] += 1
    k = dc[0]
    return f"v_dot2c_f32_bf16 v{16+k%8}, v{128+k%16}, v{128+k%16}"
def dotv3():
    dc[0] += 1
    k = dc[0]
    return f"v_dot2_f32_bf16 v{16+k%8}, v{128+k%16}, v{128+k%16}, v{16+k%8}"
w = lambda n: f"s_waitcnt lgkmcnt({n})"
secs = [
 ("64 tr", lambda: [tr() for _ in range(64)]),
 ("64 b128", lambda: [b128() for _ in range(64)]),
 ("16x(mf+2tr)", lambda: sum([[mf(), tr(), tr()] for _ in range(16)], [])),
 ("16x(mf+3tr)", lambda: sum([[mf(), tr(), tr(), tr()] for _ in range(16)], [])),
 ("16x(mf+4tr)", lambda: sum([[mf(), tr(), tr(), tr(), tr()] for _ in range(16)], [])),
 ("16x(mf+b128+4tr)", lambda: sum([[mf(), b128(), tr(), tr(), tr(), tr()] for _ in range(16)], [])),
 ("16x(w8+mf+2tr)", lambda: sum([[w(8), mf(), tr(), tr()] for _ in range(16)], [])),
 ("64 dot(4acc)", lambda: [dot() for _ in range(64)]),
 ("64 dot(8acc)", lambda: [dot8() for _ in range(64)]),
 ("64 dotv3(8acc)", lambda: [dotv3() for _ in range(64)]),
 ("4x(4mf+16dot)", lambda: sum([[mf(), mf(), mf(), mf()] + [dot() for _ in range(16)] for _ in range(4)], [])),
 ("4x(4mf+16dot8)", lambda: sum([[mf(), mf(), mf(), mf()] + [dot8() for _ in range(16)] for _ in range(4)], [])),
 ("chunk x2", lambda: sum([[w(5), mf(), b128(), tr(), tr(), mf(), tr(), tr(), b128(), w(6), mf(), tr(), tr(), tr(), mf(), tr()] + [dot() for _ in range(16)] + [w(5), mf(), mf(), w(0),
        mf(), b128(), tr(), tr(), tr(), tr(), mf(), b128(), tr(), tr(), tr(), tr()] + [dot() for _ in range(16)] for _ in range(2)], [])),
 ("chunk x2 nodots", lambda: sum([[w(5), mf(), b128(), tr(), tr(), mf(), tr(), tr(), b128(), w(6), mf(), tr(), tr(), tr(), mf(), tr()] + [w(5), mf(), mf(), w(0),
        mf(), b128(), tr(), tr(), tr(), tr(), mf(), b128(), tr(), tr(), tr(), tr()] for _ in range(2)], [])),
 ("lat: tr+wait x16", lambda: sum([[tr(), w(0)] for _ in range(16)], [])),
 ("lat: b128+wait x16", lambda: sum([[b128(), w(0)] for _ in range(16)], [])),
 ("lat: 10reads+wait x8", lambda: sum([[b128(), tr(), tr(), tr(), tr(), b128(), tr(), tr(), tr(), tr(), w(0)] for _ in range(8)], [])),
 ("dots with reads: 16x(2dot+tr)", lambda: sum([[dot(), dot(), tr()] for _ in range(16)], [])),
]
for si, (name, fn) in enumerate(secs):
    A(f"; ---- {name}")
    A("s_mov_b32 s20, 0")
    A(f"L_s{si}:")
    A("s_cmp_eq_u32 s20, 1")
    A(f"s_cbranch_scc0 L_n{si}")
    A("s_waitcnt lgkmcnt(0)\ns_memtime s[12:13]\ns_waitcnt lgkmcnt(0)")
    A(f"L_n{si}:")
    for l in fn(): A(l)
    A(f"s_add_u32 s20, s20, 1\ns_cmp_lt_u32 s20, 17\ns_cbranch_scc1 L_s{si}")
    A("s_waitcnt lgkmcnt(0)")
    A("s_memtime s[14:15]")
    A("s_waitcnt lgkmcnt(0)")
    A("s_sub_u32 s16, s14, s12\ns_lshr_b32 s16, s16, 4")
    A("v_mov_b32 v5, s16")
    A(f"v_mov_b32 v6, {si*4}")
    A("v_cmp_eq_u32 vcc, 0, v0")
    A("s_and_saveexec_b64 s[18:19], vcc")
    A(f"s_cbranch_execz L_sk{si}")
    A("s_cmp_lg_u32 s2, 0")
    A(f"s_cbranch_scc1 L_sk{si}")
    A("buffer_store_dword v5, v6, s[8:11], 0 offen")
    A(f"L_sk{si}:")
    A("s_mov_b64 exec, s[18:19]")
    A("s_nop 15")
A("L_end:\ns_endpgm")
A(f""".section .rodata,"a"
.p2align 6
.amdhsa_kernel {K}
  .amdhsa_next_free_vgpr 256
  .amdhsa_next_free_sgpr 102
  .amdhsa_accum_offset 256
  .amdhsa_group_segment_fixed_size 0
  .amdhsa_kernarg_size 64
  .amdhsa_user_sgpr_count 2
  .amdhsa_user_sgpr_kernarg_segment_ptr 1
  .amdhsa_system_sgpr_workgroup_id_x 1
.end_amdhsa_kernel""")
open(f"mb8_{NW}_{MODE}.s", "w").write("\n".join(out) + "\n")
print("\n".join(f"{i}: {s[0]}" for i, s in enumerate(secs)))
```
